```python
import torch

def _softmax(x, axis=-1):
    return torch.softmax(x, dim=axis)

def _gelu(x):
    return torch.nn.functional.gelu(x, approximate='tanh')

def _silu(x):
    return torch.nn.functional.silu(x)

def _sigmoid(x):
    return torch.sigmoid(x)

def _layernorm(x, axis=-1, eps=1e-05):
    m = x.mean(dim=axis, keepdim=True)
    v = x.var(dim=axis, keepdim=True, unbiased=False)
    return (x - m) / torch.sqrt(v + eps)

def _scatter_add(tgt, idx, src, axis=0):
    return tgt.clone().index_add_(axis, idx, src)

def _segment_sum(src, seg, n):
    out = torch.zeros((n,) + src.shape[1:], dtype=src.dtype)
    return out.index_add_(0, seg, src)

def _pad(x, pw):
    flat = tuple((v for pair in reversed(pw) for v in pair))
    return torch.nn.functional.pad(x, flat)
kernel_name = 'sequential_preLN__memory_aug_recurrent_mem_tr__mixer_s_mlp__prompt'

def setup_inputs():

    _w = lambda a: (lambda t: t.to(torch.bfloat16) if t.is_floating_point() else t)(torch.as_tensor(a))

    def _A_setup():
        B, S, Dm = (1, 2048, 640)
        H, Dh = (32, 128)
        M, seg = (8, 32)
        seg = min(seg, S)
        S = S // seg * seg
        return {'x': _w((lambda *s: torch.randn(*s, dtype=torch.bfloat16) * 0.05)(B, S, Dm)), 'mem0': _w((lambda *s: torch.randn(*s, dtype=torch.bfloat16) * 0.2)(B, M, Dm)), 'Wq': _w((lambda *s: torch.randn(*s, dtype=torch.bfloat16) * 1.6)(Dm, H, Dh) * Dm ** (-0.5)), 'Wk': _w((lambda *s: torch.randn(*s, dtype=torch.bfloat16) * 1.6)(Dm, H, Dh) * Dm ** (-0.5)), 'Wv': _w((lambda *s: torch.randn(*s, dtype=torch.bfloat16) * 0.2)(Dm, H, Dh) * Dm ** (-0.5)), 'Wo': _w((lambda *s: torch.randn(*s, dtype=torch.bfloat16) * 0.2)(H, Dh, Dm) * (H * Dh) ** (-0.5)), 'seg_len': seg}
    _A_in = _A_setup()

    def _B_setup():
        B, S, D, F = (1, 2048, 640, 1728)
        return {'x': _w((lambda *s: torch.randn(*s, dtype=torch.bfloat16) * 0.05)(B, S, D)), 'w1': _w((lambda *s: torch.randn(*s, dtype=torch.bfloat16) * 0.8)(D, D) * D ** (-0.5)), 'w2': _w((lambda *s: torch.randn(*s, dtype=torch.bfloat16) * 0.8)(D, D) * D ** (-0.5)), 'w3': _w((lambda *s: torch.randn(*s, dtype=torch.bfloat16) * 0.8)(D, F) * D ** (-0.5)), 'w4': _w((lambda *s: torch.randn(*s, dtype=torch.bfloat16) * 0.8)(F, D) * F ** (-0.5))}
    _B_in = _B_setup()
    return {'A_x': _A_in['x'], 'A_mem0': _A_in['mem0'], 'A_Wq': _A_in['Wq'], 'A_Wk': _A_in['Wk'], 'A_Wv': _A_in['Wv'], 'A_Wo': _A_in['Wo'], 'A_seg_len': _A_in['seg_len'], 'B_x': _B_in['x'], 'B_w1': _B_in['w1'], 'B_w2': _B_in['w2'], 'B_w3': _B_in['w3'], 'B_w4': _B_in['w4']}

def reference(A_x, A_mem0, A_Wq, A_Wk, A_Wv, A_Wo, A_seg_len, B_x, B_w1, B_w2, B_w3, B_w4):

    def _A_ref(x, mem0, Wq, Wk, Wv, Wo, seg_len):
        B, S, Dm = x.shape
        H, Dh = (Wq.shape[1], Wq.shape[2])
        M = mem0.shape[1]
        scale = Dh ** (-0.5)
        n_seg = S // seg_len
        L = M + seg_len
        idx = torch.arange(L)
        mask = (idx[:, None] < M) | (idx[:, None] >= idx[None, :])
        mem = mem0
        outs = []
        for s in range(n_seg):
            xs = x[:, s * seg_len:(s + 1) * seg_len, :].clone()
            h = torch.concatenate([mem, xs], axis=1)
            q = torch.einsum('btd,dhe->bhte', h, Wq)
            k = torch.einsum('btd,dhe->bhte', h, Wk)
            v = torch.einsum('btd,dhe->bhte', h, Wv)
            scores = torch.einsum('bhqe,bhke->bhqk', q, k) * scale
            scores = torch.where(mask[None, None], scores, -1000000000.0)
            p = _softmax(scores, axis=-1)
            o = torch.einsum('bhqk,bhke->bhqe', p, v)
            o = torch.einsum('bhte,hed->btd', o, Wo)
            mem = o[:, :M, :].clone()
            outs.append(o[:, M:, :])
        return torch.concatenate(outs, axis=1)

    def _B_ref(x, w1, w2, w3, w4):
        B, S, D = x.shape
        h = _gelu(_layernorm(x, axis=-1) @ w1)
        c = D // 4
        g0 = _pad(h[:, :, 0 * c:1 * c], ((0, 0), (1, 0), (0, 0)))[:, :S, :]
        g1 = _pad(h[:, :, 1 * c:2 * c], ((0, 0), (0, 1), (0, 0)))[:, 1:, :]
        g2 = _pad(h[:, :, 2 * c:3 * c], ((0, 0), (2, 0), (0, 0)))[:, :S, :]
        g3 = _pad(h[:, :, 3 * c:], ((0, 0), (0, 2), (0, 0)))[:, 2:, :]
        hs = torch.concatenate([g0, g1, g2, g3], axis=-1) @ w2
        x1 = x + hs
        h2 = _gelu(_layernorm(x1, axis=-1) @ w3) @ w4
        return x1 + h2
    x = A_x
    h = x + _A_ref(_layernorm(x, axis=-1), A_mem0, A_Wq, A_Wk, A_Wv, A_Wo, A_seg_len)
    h2 = h + _B_ref(_layernorm(h, axis=-1), B_w1, B_w2, B_w3, B_w4)
    return h2
```

```python
import re
class Asm:
    def __init__(self): self.L = []; self.uid = 0
    def __call__(self, s):
        for ln in s.split("\n"):
            ln = ln.strip()
            if ln: self.L.append(ln)
    def label(self, s): self.L.append(s + ":")
    def newlabel(self, p="L"): self.uid += 1; return f"{p}_{self.uid}"
    def text(self): return "\n".join(("" if l.endswith(":") else "    ") + l for l in self.L) + "\n"

def vr(b, n=1): return f"v{b}" if n == 1 else f"v[{b}:{b+n-1}]"
def ar(b, n=1): return f"a{b}" if n == 1 else f"a[{b}:{b+n-1}]"
def sr(b, n=1): return f"s{b}" if n == 1 else f"s[{b}:{b+n-1}]"
def ur(u, n=1):
    return vr(u, n) if u < 256 else ar(u - 256, n)

_reg = re.compile(r"\b([vas])(\d+)\b|\b([vas])\[(\d+):(\d+)\]")
def regs(op):
    out = []
    for m in _reg.finditer(op):
        if m.group(1): out.append((m.group(1), int(m.group(2))))
        else: out += [(m.group(3), i) for i in range(int(m.group(4)), int(m.group(5)) + 1)]
    return out
TRANS = ("v_exp_", "v_log_", "v_rcp_", "v_rsq_", "v_sqrt_", "v_sin_", "v_cos_")
def parse(ln):
    ln = ln.split(";")[0].strip()
    if not ln or ln.endswith(":") or ln.startswith("."): return None
    p = ln.split(None, 1); op = p[0]; rest = p[1] if len(p) > 1 else ""
    ops = [o.strip() for o in re.split(r",(?![^\[]*\])", rest)] if rest else []
    d = dict(op=op, txt=ln, w=[], r=[], kind="other")
    R = lambda i: regs(ops[i]) if i < len(ops) else []
    allr = lambda a: [x for i in range(a, len(ops)) for x in R(i)]
    if op.startswith("v_mfma") or op.startswith("v_smfmac"):
        d["kind"] = "mfma"; d["w"] = R(0); d["ab"] = R(1) + R(2)
        if op.startswith("v_smfmac"): d["c"] = R(0); d["ab"] += R(3)
        else: d["c"] = R(3)
        d["r"] = d["ab"] + d["c"]
        d["passes"] = 8 if "32x32" in op else 4
    elif op.startswith("v_permlane") and "swap" in op:
        d["kind"] = "valu"; d["perm"] = True; d["w"] = R(0) + R(1); d["r"] = R(0) + R(1)
    elif op.startswith("v_cmp"):
        d["kind"] = "valu"; d["w"] = R(0); d["r"] = allr(1); d["wvcc"] = ops[0] == "vcc"; d["wsg"] = True
    elif op.startswith("v_readfirstlane") or op.startswith("v_readlane"):
        d["kind"] = "valu"; d["w"] = R(0); d["r"] = allr(1); d["rfl"] = True; d["wsg"] = True
    elif op.startswith("v_"):
        d["kind"] = "valu"; d["w"] = R(0); d["r"] = allr(1)
        if op.startswith(("v_fmac", "v_pk_fmac", "v_dot2c")): d["r"] += R(0)
        if "dpp" in ln or "row_" in ln or "quad_perm" in ln: d["dpp"] = True; d["r"] += R(0)
        if op.startswith(TRANS): d["trans"] = True
        if op.startswith("v_cndmask") and ops[-1].split()[0] == "vcc": d["rvcc"] = True
    elif op.startswith(("ds_read", "ds_bpermute", "ds_permute", "ds_swizzle")):
        d["kind"] = "ds"; d["w"] = R(0); d["r"] = allr(1)
    elif op.startswith("ds_"):
        d["kind"] = "ds"; d["r"] = allr(0)
    elif op.startswith(("global_load_lds", )) or (op.startswith("buffer_load") and " lds" in ln):
        d["kind"] = "vmem"; d["r"] = allr(0); d["dma"] = True
    elif op.startswith(("global_load", "buffer_load")) or (op.startswith(("global_atomic", "buffer_atomic")) and " sc0" in ln and op.startswith("global")):
        d["kind"] = "vmem"; d["w"] = R(0); d["r"] = allr(1)
    elif op.startswith(("global_", "buffer_")):
        d["kind"] = "vmem"; d["r"] = allr(0)
        if "x4" in op or "x3" in op:
            d["wide"] = R(1) if op.startswith("global") else R(0)
    elif op == "s_nop": d["kind"] = "nop"; d["n"] = int(ops[0], 0) + 1
    elif op.startswith("s_"):
        d["kind"] = "salu"; d["w"] = R(0) if not op.startswith(("s_cmp", "s_cbranch", "s_waitcnt", "s_barrier", "s_branch", "s_bitcmp")) else []
        d["r"] = allr(1); d["wm0"] = bool(ops) and ops[0] == "m0"; d["wexec"] = bool(ops) and ops[0] == "exec"
    return d

def check(lines, mfma_states=1, verbose=True):
    ins = [(i, parse(l)) for i, l in enumerate(lines)]
    ins = [(i, d) for i, d in ins if d]
    errs = []
    for k, (i, c) in enumerate(ins):
        dist = 0; dist_m = 0
        for kk in range(k - 1, max(-1, k - 40), -1):
            j, p = ins[kk]
            def need(n, dd, why):
                if dd < n: errs.append(f"line {i}: '{c['txt']}' needs {n} ws after line {j} '{p['txt']}' (has {dd}): {why}")
            pw = set(p["w"]); cr = set(c["r"]); cw = set(c["w"])
            if p["kind"] == "valu":
                vw = {x for x in pw if x[0] in "va"}; sw = {x for x in pw if x[0] == "s"}
                if c["kind"] == "mfma" and vw & cr: need(2, dist, "valu->mfma")
                if c.get("perm") and vw & cr: need(2, dist, "valu->permlane")
                if c.get("dpp") and vw & cr: need(2, dist, "valu->dpp")
                if c.get("rfl") and vw & cr: need(1, dist, "valu->readlane")
                if p.get("trans") and c["kind"] in ("valu",) and not c.get("trans") and vw & cr: need(1, dist, "trans->valu")
                if p.get("trans") and c["kind"] in ("ds", "vmem") and vw & cr: need(1, dist, "trans->mem")
                if sw & cr and c["kind"] == "valu": need(2, dist, "valu sgpr->valu")
                if sw & cr and c["kind"] == "vmem": need(5, dist, "valu sgpr->vmem")
                if p.get("wvcc") and c.get("rvcc"): need(2, dist, "vcc->cndmask")
            if p["kind"] == "mfma":
                n = {4: 8, 8: 12}[p["passes"]]
                if c["kind"] in ("valu", "ds", "vmem") and pw & (cr | cw): need(n, dist_m, "mfma D->valu/mem")
                if c["kind"] == "mfma":
                    if pw & set(c["ab"]): need(n, dist_m, "mfma D->mfma AB")
                    if pw & set(c["c"]) and set(c["c"]) != pw: need(n - 2, dist_m, "mfma D->partial C")
                    if pw & cw and not (pw & set(c["c"])): need(n-2, dist_m, "mfma WAW")
                if c["kind"] == "valu" and set(p["c"]) & cw: need({4: 3, 8: 7}[p["passes"]], dist_m, "mfma C WAR")
            if p.get("wide") and c["kind"] == "valu" and set(p["wide"]) & cw: need(2, dist, "wide store WAR")
            if p.get("wm0") and c.get("dma"): need(1, dist, "m0->dma")
            if p["kind"] == "nop": dist += p["n"]; dist_m += p["n"]
            elif p["kind"] == "mfma": dist += 1; dist_m += mfma_states
            else: dist += 1; dist_m += 1
            if dist > 24: break
    if verbose:
        for e in errs[:40]: print("HAZARD", e)
    return errs
```

```python
import sys; sys.path.insert(0, "gen")
from asmlib import *; from layout import *; import chain as C, bulk as B
NAME = "sequential_preLN__memory_aug_recurrent_mem_tr__mixer_s_mlp__prompt"
def body(chain_kw=None, diag=False):
    a = Asm()
    a(f"""
    s_cmp_ge_u32 s2, 256
    s_cbranch_scc1 k_exit
    s_load_dwordx2 s[{C.S_WS}:{C.S_WS+1}], s[0:1], {KA['ws']}
    s_load_dwordx2 s[{C.S_DBG}:{C.S_DBG+1}], s[0:1], {KA['dbg']}
    s_getreg_b32 s{C.S_X}, hwreg(HW_REG_XCC_ID)
    s_and_b32 s{C.S_X}, s{C.S_X}, 7
    v_mov_b32 v3, {C.L_MISC}
    v_cmp_eq_u32 vcc, 0, v0
    s_waitcnt lgkmcnt(0)
    """)
    if diag: a("s_memrealtime s[80:81]")
    a(f"""
    s_and_saveexec_b64 s[12:13], vcc
    s_cbranch_execz k_tk
    s_lshl_b32 s14, s{C.S_X}, 2
    v_mov_b32 v1, s14
    v_mov_b32 v2, 1
    global_atomic_add v2, v1, v2, s[{C.S_DBG}:{C.S_DBG+1}] sc0
    s_waitcnt vmcnt(0)
    ds_write_b32 v3, v2
    s_waitcnt lgkmcnt(0)
    k_tk:
    s_mov_b64 exec, s[12:13]
    s_barrier
    ds_read_b32 v2, v3
    s_waitcnt lgkmcnt(0)
    v_readfirstlane_b32 s{C.S_H}, v2
    s_barrier
    s_cmp_ge_u32 s{C.S_H}, 32
    s_cbranch_scc1 k_end
    s_cmp_ge_u32 s{C.S_X}, 2
    s_cbranch_scc1 k_bulk
    """)
    kw = dict(delay=55, rdelay=20, x=dict(gap=36)); kw.update(chain_kw or {})
    kw["x"] = dict(kw["x"], fused=1)
    C.gen_chain(a, **kw)
    a("s_branch k_end")
    a.label("k_bulk")
    B.gen_bulk(a)
    a.label("k_end")
    if diag:
        a(f"""
        s_memrealtime s[82:83]
        s_waitcnt lgkmcnt(0)
        s_lshl_b32 s14, s{C.S_X}, 5
        s_add_u32 s14, s14, s{C.S_H}
        s_lshl_b32 s14, s14, 4
        s_add_u32 s14, s14, {WS_TIM + 0x100000}
        v_mov_b32 v1, s14
        v_mov_b32 v4, s80
        v_mov_b32 v5, s82
        v_mov_b32 v6, s84
        v_mov_b32 v7, s{C.S_BOUND}
        global_store_dwordx4 v1, v[4:7], s[{C.S_WS}:{C.S_WS+1}]
        s_waitcnt vmcnt(0)
        """)
    a.label("k_exit")
    return a
HEAD = open("cdna_kernels/" + NAME + ".s.ref").read().split("; Override launch geometry")[0]
def full(a):
    return HEAD + f"""; One persistent launch, one workgroup per CU. Roles are taken from the hardware XCC id plus a per-XCD ticket:
; XCD 0/1 run the recurrent memory chain (one head per CU, weights resident), the others run the token-parallel stages.
; @launch grid=(256,1,1) block=(256,1,1) lds=163840
.amdgcn_target "amdgcn-amd-amdhsa--gfx950"
.text
.globl {NAME}_kernel
.p2align 8
.type {NAME}_kernel,@function
{NAME}_kernel:
{a.text()}    s_endpgm
.section .rodata,"a"
.p2align 6
.amdhsa_kernel {NAME}_kernel
  .amdhsa_next_free_vgpr 512
  .amdhsa_next_free_sgpr 102
  .amdhsa_accum_offset 256
  .amdhsa_group_segment_fixed_size 0
  .amdhsa_kernarg_size 120
  .amdhsa_user_sgpr_count 2
  .amdhsa_user_sgpr_kernarg_segment_ptr 1
  .amdhsa_system_sgpr_workgroup_id_x 1
.end_amdhsa_kernel
"""
if __name__ == "__main__":
    C.DIAG = False
    a = body()
    errs = check(a.L, mfma_states=4)
    out = sys.argv[1] if len(sys.argv) > 1 else "cdna_kernels/" + NAME + ".s"
    open(out, "w").write(full(a))
    print("wrote", out, "lines", len(a.L), "hazards", len(errs))
```
